```python
import torch

def _softmax(x, axis=-1):
    return torch.softmax(x, dim=axis)
def _gelu(x):
    return torch.nn.functional.gelu(x, approximate="tanh")
def _silu(x):
    return torch.nn.functional.silu(x)
def _sigmoid(x):
    return torch.sigmoid(x)
def _layernorm(x, axis=-1, eps=1e-5):
    m = x.mean(dim=axis, keepdim=True)
    v = x.var(dim=axis, keepdim=True, unbiased=False)
    return (x - m) / torch.sqrt(v + eps)
def _scatter_add(tgt, idx, src, axis=0):
    return tgt.clone().index_add_(axis, idx, src)
def _segment_sum(src, seg, n):
    out = torch.zeros((n,) + src.shape[1:], dtype=src.dtype)
    return out.index_add_(0, seg, src)
def _pad(x, pw):
    flat = tuple(v for pair in reversed(pw) for v in pair)
    return torch.nn.functional.pad(x, flat)

kernel_name = 'concat_heads__compressed_kv_cla__sliding_block__prompt'

def setup_inputs():

    _w = (lambda a: (lambda t: t.to(torch.bfloat16) if t.is_floating_point() else t)(torch.as_tensor(a)))
    def _A_setup():
        B, H, Sq, Sk, D, M = 1, 16, 2048, 2048, 256, 448
        Dc = 4 * D
        return {
            "x": _w((lambda *s: torch.randn(*s, dtype=torch.bfloat16) * 0.2)(B, Sq, M)),
            "c_kv": _w((lambda *s: torch.randn(*s, dtype=torch.bfloat16) * 1.6)(B, Sk, Dc)),
            "w_q": _w((lambda *s: torch.randn(*s, dtype=torch.bfloat16) * 3.2)(M, H, D) * (M ** -0.5)),
            "w_uk": _w((lambda *s: torch.randn(*s, dtype=torch.bfloat16) * 3.2)(Dc, H, D) * (Dc ** -0.5)),
            "w_uv": _w((lambda *s: torch.randn(*s, dtype=torch.bfloat16) * 1.6)(Dc, H, D) * (Dc ** -0.5)),
            "w_o": _w((lambda *s: torch.randn(*s, dtype=torch.bfloat16) * 1.6)(H, D, M) * ((H * D) ** -0.5)),
        }
    _A_in = _A_setup()

    def _B_setup():
        B, S, D = 1, 2048, 448
        return {
            "x": _w((lambda *s: torch.randn(*s, dtype=torch.bfloat16) * 0.4)(B, S, D)),
            "wqkv": _w((lambda *s: torch.randn(*s, dtype=torch.bfloat16) * 0.4)(D, 3 * D)),
            "wo": _w((lambda *s: torch.randn(*s, dtype=torch.bfloat16) * 0.05)(D, D)),
        }
    _B_in = _B_setup()

    return {
        "A_x": _A_in["x"],
        "A_c_kv": _A_in["c_kv"],
        "A_w_q": _A_in["w_q"],
        "A_w_uk": _A_in["w_uk"],
        "A_w_uv": _A_in["w_uv"],
        "A_w_o": _A_in["w_o"],
        "B_x": _B_in["x"],
        "B_wqkv": _B_in["wqkv"],
        "B_wo": _B_in["wo"],
    }

def reference(A_x, A_c_kv, A_w_q, A_w_uk, A_w_uv, A_w_o, B_x, B_wqkv, B_wo):
    def _A_ref(x, c_kv, w_q, w_uk, w_uv, w_o):
        B, Sq, M = x.shape[0], x.shape[1], x.shape[2]
        Sk = c_kv.shape[1]
        H, D = w_q.shape[1], w_q.shape[2]
        q = torch.einsum("bqm,mhd->bhqd", x, w_q)
        k = torch.einsum("bkc,chd->bhkd", c_kv, w_uk)
        v = torch.einsum("bkc,chd->bhkd", c_kv, w_uv)
        scores = torch.einsum("bhqd,bhkd->bhqk", q, k) * (D ** -0.5)
        off = Sk - Sq
        qi = torch.arange(Sq)[:, None]
        kj = torch.arange(Sk)[None, :]
        cmask = kj <= (qi + off)
        scores = torch.where(cmask[None, None], scores, -1e9)
        p = _softmax(scores, axis=-1)
        ctx = torch.einsum("bhqk,bhkd->bhqd", p, v)
        return torch.einsum("bhqd,hdm->bqm", ctx, w_o)

    def _B_ref(x, wqkv, wo):
        B, S, D = x.shape
        H = 16; Dh = D // H; W = 256
        qkv = (lambda x, *d: x.permute(*d))((x @ wqkv).reshape(B, S, 3, H, Dh), 2, 0, 3, 1, 4)
        q, k, v = qkv[0], qkv[1], qkv[2]
        scores = torch.einsum("bhqd,bhkd->bhqk", q, k) * (Dh ** -0.5)
        idx = torch.arange(S)
        mask = (idx[:, None] - idx[None, :] >= 0) & (idx[:, None] - idx[None, :] < W)
        scores = torch.where(mask[None, None], scores, -1e9)
        p = _softmax(scores, axis=-1)
        o = torch.einsum("bhqk,bhkd->bhqd", p, v)
        return (lambda x, *d: x.permute(*d))(o, 0, 2, 1, 3).reshape(B, S, D) @ wo

    a = _A_ref(A_x, A_c_kv, A_w_q, A_w_uk, A_w_uv, A_w_o)
    b = _B_ref(B_x, B_wqkv, B_wo)
    return torch.concatenate([a, b], axis=-1)
```

```python
def v(n, c=1):
    return f"v{n}" if c == 1 else f"v[{n}:{n+c-1}]"
def a(n, c=1):
    return f"a{n}" if c == 1 else f"a[{n}:{n+c-1}]"
def s(n, c=1):
    return f"s{n}" if c == 1 else f"s[{n}:{n+c-1}]"

class Asm:
    def __init__(self):
        self.lines = []
        self.uid = 0
    def __call__(self, txt):
        for l in txt.split("\n"):
            l = l.strip()
            if l:
                self.lines.append("    " + l)
    def c(self, txt):
        self.lines.append("    ; " + txt)
    def label(self, name):
        self.lines.append(name + ":")
    def newlabel(self, base="L"):
        self.uid += 1
        return f"{base}_{self.uid}"
    def raw(self, txt):
        self.lines.append(txt)
    def text(self):
        return "\n".join(self.lines) + "\n"

def kernel_begin(A, name):
    A.raw(".text")
    A.raw(f".globl {name}")
    A.raw(".p2align 8")
    A.raw(f".type {name},@function")
    A.raw(f"{name}:")

def kernel_desc(A, name, vgpr, sgpr=102, accum=None, kernarg=96, wgy=False):
    if accum is None:
        accum = min(256, (vgpr + 3) // 4 * 4)
    A.raw('.section .rodata,"a"')
    A.raw(".p2align 6")
    A.raw(f".amdhsa_kernel {name}")
    A.raw(f"  .amdhsa_next_free_vgpr {vgpr}")
    A.raw(f"  .amdhsa_next_free_sgpr {sgpr}")
    A.raw(f"  .amdhsa_accum_offset {accum}")
    A.raw("  .amdhsa_group_segment_fixed_size 0")
    A.raw(f"  .amdhsa_kernarg_size {kernarg}")
    A.raw("  .amdhsa_user_sgpr_count 2")
    A.raw("  .amdhsa_user_sgpr_kernarg_segment_ptr 1")
    A.raw("  .amdhsa_system_sgpr_workgroup_id_x 1")
    if wgy:
        A.raw("  .amdhsa_system_sgpr_workgroup_id_y 1")
    A.raw(".end_amdhsa_kernel")

META_HEAD = """
.amdgpu_metadata
---
amdhsa.version: [1, 2]
amdhsa.kernels:
"""
META_K = """  - .name: {name}
    .symbol: {name}.kd
    .kernarg_segment_size: {ka}
    .kernarg_segment_align: 8
    .group_segment_fixed_size: 0
    .private_segment_fixed_size: 0
    .wavefront_size: 64
    .sgpr_count: 102
    .vgpr_count: {vgpr}
    .max_flat_workgroup_size: 1024
    .args:
      - {{.name: kernargs, .size: {ka}, .offset: 0, .value_kind: by_value}}
"""
META_TAIL = """...
.end_amdgpu_metadata
"""
def metadata(kernels, ka=96):
    t = META_HEAD
    for name, vg in kernels:
        t += META_K.format(name=name, ka=ka, vgpr=vg)
    return t + META_TAIL
```

```python
from asmlib import *

MB = 1 << 20
import struct, math
def f2u(x): return "0x%08x" % struct.unpack("<I", struct.pack("<f", x))[0]
SCALE_A = math.log2(math.e) / 16.0
SCALE_B = math.log2(math.e) / math.sqrt(28.0)
WS_Q, WS_K, WS_V, WS_BQ = 0, 16*MB, 32*MB, 48*MB

def gen_k1(A, name, NW=8, stamps=False):
    nF = 8 if NW == 4 else 4
    nT = 8
    WF = 2 if NW == 4 else 4
    ppt = 16 // NW
    ppw_w = 16 // NW
    PP = ppt + ppw_w
    useA = (NW == 4)
    if useA:
        ACC = 0
        vb = 0
    else:
        ACC = 0
        vb = 128
    def acc(j, i, n=4):
        idx = (j * nT + i) * 4
        return a(ACC + idx, n) if useA else v(ACC + idx, n)
    def accr(j, i, r):
        idx = (j * nT + i) * 4 + r
        return idx
    TF = vb
    FF = TF + 64
    M = FF + 2 * nF * 4
    V_TOFF = M
    V_WOFF = V_TOFF + ppt
    V_TB0 = V_WOFF + ppw_w
    V_TB1 = V_TB0 + 1
    V_TRD = V_TB1 + 1
    V_FRD = V_TRD + 1
    V_ST = V_FRD + nF
    V_T0 = V_ST + 1
    V_T1, V_T2, V_T3 = V_T0 + 1, V_T0 + 2, V_T0 + 3
    V_LANE = V_T0 + 4
    V_PK = TF
    NV = V_LANE + 1
    def tf(set_, i): return v(TF + (set_ * 8 + i) * 4, 4)
    def ff(set_, j): return v(FF + (set_ * nF + j) * 4, 4)
    def ffh(set_, j, half): return v(FF + (set_ * nF + j) * 4 + 2 * half, 2)
    S_TSRD = 8
    S_WSRD = 12
    S_OSRD = 16
    S_W = 20
    S_TSTR, S_WSTR, S_WMODE, S_NST, S_TYPE, S_SH, S_MI = 21, 22, 23, 24, 25, 26, 27
    S_TK = 28
    S_WK = 29
    S_TRD = 30
    S_TWR = 31
    S_STEP = 32
    S_TSZ, S_WSZ = 33, 34
    S_WM0 = 35
    S_TM0 = 36
    S_THALF = 37
    S_WSTEP = 38
    S_T0, S_T1, S_T2, S_T3 = 40, 41, 42, 43
    S_SOFF = 44
    S_TSTG = 45
    S_WSTP = 46
    S_NSTG = 47
    S_SCALE = 48
    S_STAMP = 50
    TOK_LDS = 65536

    kernel_begin(A, name)
    if stamps:
        A(f"s_memtime s[{S_STAMP}:{S_STAMP+1}]")
    A("s_cmp_ge_u32 s2, 432")
    A(f"s_cbranch_scc1 {name}_end")
    A("s_load_dwordx4 s[60:63], s[0:1], 0")
    A("s_load_dwordx4 s[64:67], s[0:1], 16")
    A("s_load_dwordx2 s[68:69], s[0:1], 32")
    A("s_load_dwordx4 s[72:75], s[0:1], 48")
    A("s_load_dwordx2 s[76:77], s[0:1], 88")
    A(f"v_and_b32 v{V_LANE}, 63, v0")
    A(f"v_lshrrev_b32 v{V_T0}, 6, v0")
    A("s_nop 0")
    A(f"v_readfirstlane_b32 s{S_W}, v{V_T0}")
    A(f"s_and_b32 s{S_T0}, s2, 7")
    A(f"s_lshr_b32 s{S_T1}, s2, 3")
    L_Q, L_B, L_DEC = f"{name}_jq", f"{name}_jb", f"{name}_dec"
    A("s_waitcnt lgkmcnt(0)")
    A("s_cmp_ge_u32 s2, 256")
    A(f"s_cbranch_scc1 {L_Q}")
    A(f"s_and_b32 s{S_MI}, s{S_T1}, 7")
    A(f"s_lshr_b32 s{S_T1}, s{S_T1}, 3")
    A(f"s_and_b32 s{S_T2}, s{S_T1}, 1")
    A(f"s_lshl_b32 s{S_T0}, s{S_T0}, 1")
    A(f"s_add_u32 s{S_T0}, s{S_T0}, s{S_T2}")
    A(f"s_lshr_b32 s{S_TYPE}, s{S_T1}, 1")
    A(f"s_lshl_b32 s{S_SH}, s{S_TYPE}, 4")
    A(f"s_add_u32 s{S_SH}, s{S_SH}, s{S_T0}")
    A(f"s_add_u32 s{S_SH}, s{S_SH}, 16")
    A(f"s_mov_b32 s{S_TSTR}, 2048")
    A(f"s_mov_b32 s{S_WSTR}, 8192")
    A(f"s_mov_b32 s{S_WMODE}, 0")
    A(f"s_mov_b32 s{S_NST}, 32")
    A(f"s_mov_b32 s{S_SCALE}, 0")
    A(f"s_mov_b32 s{S_TSZ}, {2048*2048}")
    A(f"s_mov_b32 s{S_WSZ}, {1024*8192}")
    A(f"s_mov_b32 s{S_TSRD}, s62")
    A(f"s_mov_b32 s{S_TSRD+1}, s63")
    A(f"s_cmp_eq_u32 s{S_TYPE}, 0")
    A(f"s_cselect_b32 s{S_WSRD}, s66, s68")
    A(f"s_cselect_b32 s{S_WSRD+1}, s67, s69")
    A(f"s_lshl_b32 s{S_T3}, s{S_T0}, 9")
    A(f"s_branch {L_DEC}")
    A.label(L_Q)
    A("s_cmp_ge_u32 s2, 384")
    A(f"s_cbranch_scc1 {L_B}")
    A(f"s_sub_u32 s{S_T1}, s{S_T1}, 32")
    A(f"s_and_b32 s{S_MI}, s{S_T1}, 7")
    A(f"s_lshr_b32 s{S_T1}, s{S_T1}, 3")
    A(f"s_lshl_b32 s{S_T0}, s{S_T0}, 1")
    A(f"s_add_u32 s{S_T0}, s{S_T0}, s{S_T1}")
    A(f"s_mov_b32 s{S_TYPE}, 0")
    A(f"s_mov_b32 s{S_SH}, s{S_T0}")
    A(f"s_mov_b32 s{S_TSTR}, 896")
    A(f"s_mov_b32 s{S_WSTR}, 8192")
    A(f"s_mov_b32 s{S_WMODE}, 0")
    A(f"s_mov_b32 s{S_NST}, 14")
    A(f"s_mov_b32 s{S_SCALE}, {f2u(SCALE_A)}")
    A(f"s_mov_b32 s{S_TSZ}, {2048*896}")
    A(f"s_mov_b32 s{S_WSZ}, {448*8192}")
    A(f"s_mov_b32 s{S_TSRD}, s60")
    A(f"s_mov_b32 s{S_TSRD+1}, s61")
    A(f"s_mov_b32 s{S_WSRD}, s64")
    A(f"s_mov_b32 s{S_WSRD+1}, s65")
    A(f"s_lshl_b32 s{S_T3}, s{S_T0}, 9")
    A(f"s_branch {L_DEC}")
    A.label(L_B)
    A(f"s_mov_b32 s{S_MI}, s{S_T0}")
    A(f"s_sub_u32 s{S_T1}, s{S_T1}, 48")
    A(f"s_lshr_b32 s{S_T2}, s{S_T1}, 1")
    A(f"s_cmp_eq_u32 s{S_T2}, 2")
    A(f"s_cselect_b32 s{S_TYPE}, 1, 0")
    A(f"s_add_u32 s{S_SH}, s{S_T1}, 48")
    A(f"s_mov_b32 s{S_TSTR}, 896")
    A(f"s_mov_b32 s{S_WSTR}, 2688")
    A(f"s_mov_b32 s{S_WMODE}, 1")
    A(f"s_mov_b32 s{S_NST}, 14")
    A(f"s_cmp_eq_u32 s{S_T2}, 0")
    A(f"s_cselect_b32 s{S_SCALE}, {f2u(SCALE_B)}, 0")
    A(f"s_mov_b32 s{S_TSZ}, {2048*896}")
    A(f"s_mov_b32 s{S_WSZ}, {448*2688}")
    A(f"s_mov_b32 s{S_TSRD}, s72")
    A(f"s_mov_b32 s{S_TSRD+1}, s73")
    A(f"s_mov_b32 s{S_WSRD}, s74")
    A(f"s_mov_b32 s{S_WSRD+1}, s75")
    A(f"s_mul_i32 s{S_T3}, s{S_T1}, 448")
    A.label(L_DEC)
    A(f"s_mul_i32 s{S_T0}, s{S_MI}, s{S_TSTR}")
    A(f"s_lshl_b32 s{S_T0}, s{S_T0}, 8")
    A(f"s_add_u32 s{S_TSRD}, s{S_TSRD}, s{S_T0}")
    A(f"s_addc_u32 s{S_TSRD+1}, s{S_TSRD+1}, 0")
    A(f"s_sub_u32 s{S_TSZ}, s{S_TSZ}, s{S_T0}")
    A(f"s_mov_b32 s{S_TSRD+2}, s{S_TSZ}")
    A(f"s_mov_b32 s{S_TSRD+3}, 0x20000")
    A(f"s_add_u32 s{S_WSRD}, s{S_WSRD}, s{S_T3}")
    A(f"s_addc_u32 s{S_WSRD+1}, s{S_WSRD+1}, 0")
    A(f"s_sub_u32 s{S_WSZ}, s{S_WSZ}, s{S_T3}")
    A(f"s_mov_b32 s{S_WSRD+2}, s{S_WSZ}")
    A(f"s_mov_b32 s{S_WSRD+3}, 0x20000")
    A(f"s_lshl_b32 s{S_T0}, s{S_SH}, 20")
    A(f"s_add_u32 s{S_OSRD}, s76, s{S_T0}")
    A(f"s_addc_u32 s{S_OSRD+1}, s77, 0")
    A(f"s_mov_b32 s{S_OSRD+2}, {MB}")
    A(f"s_mov_b32 s{S_OSRD+3}, 0x20000")
    A(f"s_lshr_b32 s{S_NSTG}, s{S_NST}, 1")
    A(f"s_lshl_b32 s{S_THALF}, s{S_TSTR}, 7")
    A(f"s_lshl_b32 s{S_WSTEP}, s{S_WSTR}, 5")
    A(f"s_mul_i32 s{S_WM0}, s{S_W}, {ppw_w*1024}")
    A(f"s_mul_i32 s{S_TM0}, s{S_W}, {ppt*1024}")
    A(f"s_add_u32 s{S_TM0}, s{S_TM0}, {TOK_LDS}")
    L = V_LANE
    for b in range(ppt):
        A(f"s_mul_i32 s{S_T0}, s{S_W}, {ppt}")
        A(f"s_add_u32 s{S_T0}, s{S_T0}, {b}")
        A(f"s_lshr_b32 s{S_T1}, s{S_T0}, 2")
        A(f"s_lshl_b32 s{S_T1}, s{S_T1}, 5")
        A(f"s_and_b32 s{S_T2}, s{S_T0}, 1")
        A(f"s_lshl_b32 s{S_T2}, s{S_T2}, 4")
        A(f"s_add_u32 s{S_T1}, s{S_T1}, s{S_T2}")
        A(f"s_and_b32 s{S_T2}, s{S_T0}, 2")
        A(f"s_lshl_b32 s{S_T2}, s{S_T2}, 2")
        A(f"s_add_u32 s{S_T1}, s{S_T1}, s{S_T2}")
        A(f"v_lshrrev_b32 v{V_T0}, 3, v{L}")
        A(f"v_add_u32 v{V_T0}, s{S_T1}, v{V_T0}")
        A(f"v_mul_lo_u32 v{V_T0}, v{V_T0}, s{S_TSTR}")
        A(f"s_and_b32 s{S_T2}, s{S_T0}, 1")
        A(f"s_lshl_b32 s{S_T2}, s{S_T2}, 2")
        A(f"v_lshrrev_b32 v{V_T1}, 4, v{L}")
        A(f"v_add_u32 v{V_T1}, s{S_T2}, v{V_T1}")
        A(f"v_and_b32 v{V_T2}, 7, v{L}")
        A(f"v_xor_b32 v{V_T1}, v{V_T1}, v{V_T2}")
        A(f"v_lshlrev_b32 v{V_T1}, 4, v{V_T1}")
        A(f"v_add_u32 v{V_TOFF+b}, v{V_T0}, v{V_T1}")
    for b in range(ppw_w):
        A(f"s_mul_i32 s{S_T0}, s{S_W}, {ppw_w}")
        A(f"s_add_u32 s{S_T0}, s{S_T0}, {b}")
        A(f"s_lshl_b32 s{S_T0}, s{S_T0}, 1")
        A(f"v_lshrrev_b32 v{V_T0}, 5, v{L}")
        A(f"v_add_u32 v{V_T0}, s{S_T0}, v{V_T0}")
        A(f"v_and_b32 v{V_T1}, 3, v{V_T0}")
        A(f"v_lshrrev_b32 v{V_T2}, 3, v{V_T0}")
        A(f"v_and_b32 v{V_T2}, 1, v{V_T2}")
        A(f"v_lshl_or_b32 v{V_T1}, v{V_T2}, 2, v{V_T1}")
        A(f"v_lshlrev_b32 v{V_T1}, 1, v{V_T1}")
        A(f"v_and_b32 v{V_T2}, 31, v{L}")
        A(f"v_xor_b32 v{V_T1}, v{V_T1}, v{V_T2}")
        A(f"v_mul_lo_u32 v{V_T0}, v{V_T0}, s{S_WSTR}")
        A(f"v_lshrrev_b32 v{V_T2}, 2, v{V_T1}")
        A(f"v_lshlrev_b32 v{V_T2}, 3, v{V_T2}")
        A(f"v_mul_lo_u32 v{V_T2}, v{V_T2}, s{S_WMODE}")
        A(f"v_lshlrev_b32 v{V_T1}, 4, v{V_T1}")
        A(f"v_sub_u32 v{V_T1}, v{V_T1}, v{V_T2}")
        A(f"v_add_u32 v{V_WOFF+b}, v{V_T0}, v{V_T1}")
    A(f"s_and_b32 s{S_T0}, s{S_W}, 1")
    A(f"s_lshr_b32 s{S_T1}, s{S_W}, 1")
    A(f"v_and_b32 v{V_T0}, 15, v{L}")
    A(f"v_lshrrev_b32 v{V_T1}, 1, v{V_T0}")
    A(f"v_lshrrev_b32 v{V_T2}, 4, v{L}")
    A(f"v_xor_b32 v{V_T1}, v{V_T1}, v{V_T2}")
    A(f"v_lshlrev_b32 v{V_T1}, 4, v{V_T1}")
    A(f"v_lshl_add_u32 v{V_T0}, v{V_T0}, 7, v{V_T1}")
    A(f"s_lshl_b32 s{S_T2}, s{S_T0}, 14")
    A(f"v_add_u32 v{V_TB0}, s{S_T2}, v{V_T0}")
    A(f"v_xor_b32 v{V_TB1}, 64, v{V_TB0}")
    A(f"v_bfe_u32 v{V_T0}, v{L}, 2, 2")
    A(f"v_lshrrev_b32 v{V_T1}, 4, v{L}")
    A(f"v_lshl_add_u32 v{V_T2}, v{V_T1}, 3, v{V_T0}")
    A(f"v_and_b32 v{V_T1}, 1, v{V_T1}")
    A(f"v_lshl_or_b32 v{V_T0}, v{V_T1}, 2, v{V_T0}")
    A(f"v_and_b32 v{V_T1}, 3, v{L}")
    A(f"v_lshlrev_b32 v{V_T1}, 3, v{V_T1}")
    A(f"v_lshl_add_u32 v{V_T2}, v{V_T2}, 9, v{V_T1}")
    A(f"s_mul_i32 s{S_T2}, s{S_T1}, {nF}")
    for j in range(nF):
        A(f"s_add_u32 s{S_T3}, s{S_T2}, {j}")
        A(f"v_xor_b32 v{V_T1}, s{S_T3}, v{V_T0}")
        A(f"v_lshl_add_u32 v{V_FRD+j}, v{V_T1}, 5, v{V_T2}")
    def dma_tok(b, half, slot_sreg_expr_is_twr=True):
        return [f"s_add_u32 m0, s{S_TWR}, {half*16384 + b*1024}",
                f"buffer_load_dwordx4 v{V_TOFF+b}, s[{S_TSRD}:{S_TSRD+3}], s{S_SOFF if half else S_TK} offen lds"]
    def dma_w(b, slot):
        return [f"s_add_u32 m0, s{S_WM0}, {slot*16384 + b*1024}",
                f"buffer_load_dwordx4 v{V_WOFF+b}, s[{S_WSRD}:{S_WSRD+3}], s{S_WK} offen lds"]
    A(f"s_mov_b32 s{S_TK}, 0")
    A(f"s_mov_b32 s{S_WK}, 0")
    for sig in range(-5, 0):
        if sig % 2:
            stg, half = (sig - 1) // 2 + 3, 0
        else:
            stg, half = sig // 2 + 2, 1
        A(f"s_add_u32 s{S_TWR}, s{S_TM0}, {stg*32768}")
        A(f"s_mov_b32 s{S_TK}, {stg*128}")
        A(f"s_add_u32 s{S_SOFF}, s{S_TK}, s{S_THALF}")
        for b in range(ppt):
            m0i, ld = dma_tok(b, half)
            A(m0i); A("s_nop 0"); A(ld)
        if sig + 4 >= 0:
            for b in range(ppw_w):
                m0i, ld = dma_w(b, sig + 4)
                A(m0i); A("s_nop 0"); A(ld)
            A(f"s_add_u32 s{S_WK}, s{S_WK}, s{S_WSTEP}")
    A(f"s_mov_b32 s{S_TSTG}, 2")
    A(f"s_mov_b32 s{S_WSTP}, 4")
    A(f"s_mov_b32 s{S_TRD}, {TOK_LDS}")
    for i in range(nF * nT * 4):
        if useA: A(f"v_accvgpr_write_b32 a{ACC+i}, 0")
        else: A(f"v_mov_b32 v{ACC+i}, 0")
    def reads(set_, ks, wslot):
        r = []
        tr = [f"ds_read_b128 {tf(set_, i)}, v{V_TRD} offset:{i*2048}" for i in range(nT)]
        fr = []
        for j in range(nF):
            fr.append(f"ds_read_b64_tr_b16 {ffh(set_, j, 0)}, v{V_FRD+j} offset:{wslot*16384}")
            fr.append(f"ds_read_b64_tr_b16 {ffh(set_, j, 1)}, v{V_FRD+j} offset:{wslot*16384+2048}")
        r = fr[:2] + tr + fr[2:]
        return r
    A(f"s_waitcnt vmcnt({3*PP})")
    A("s_barrier")
    A(f"v_add_u32 v{V_TRD}, s{S_TRD}, v{V_TB0}")
    for x in reads(0, 0, 0): A(x)
    A(f"s_mov_b32 s{S_STEP}, 0")
    if stamps:
        A(f"s_memtime s[{S_STAMP+2}:{S_STAMP+3}]")
    for typ in (0, 1):
        if typ == 0:
            A(f"s_cmp_eq_u32 s{S_TYPE}, 1")
            A(f"s_cbranch_scc1 {name}_loop1")
        A.label(f"{name}_loop{typ}")
        for P in range(4):
            cur = P & 1
            nxt = cur ^ 1
            pre = []
            A("s_waitcnt lgkmcnt(0)")
            A(f"s_waitcnt vmcnt({2*PP})")
            A("s_barrier")
            extras = []
            if P & 1:
                extras.append([f"s_sub_u32 s{S_TWR}, s{S_TRD}, {TOK_LDS}",
                               f"s_add_u32 s{S_TWR}, s{S_TWR}, s{S_TM0}"])
                extras.append([f"s_add_u32 s{S_TRD}, s{S_TRD}, 32768",
                               f"s_cmp_eq_u32 s{S_TRD}, {TOK_LDS + 3*32768}",
                               f"s_cselect_b32 s{S_TRD}, {TOK_LDS}, s{S_TRD}"])
                extras.append([f"s_add_u32 s{S_TSTG}, s{S_TSTG}, 1",
                               f"s_add_u32 s{S_TK}, s{S_TK}, 128",
                               f"s_cmp_lt_u32 s{S_TSTG}, s{S_NSTG}",
                               f"s_cselect_b32 s{S_TSRD+2}, s{S_TSZ}, 0"])
                extras.append([f"v_add_u32 v{V_TRD}, s{S_TRD}, v{V_TB0}"])
                half = 0
            else:
                extras.append([f"s_add_u32 s{S_SOFF}, s{S_TK}, s{S_THALF}"])
                extras.append([f"v_add_u32 v{V_TRD}, s{S_TRD}, v{V_TB1}"])
                half = 1
            extras.append([f"s_cmp_lt_u32 s{S_WSTP}, s{S_NST}",
                           f"s_cselect_b32 s{S_WSRD+2}, s{S_WSZ}, 0"])
            book = [x for e in extras for x in e]
            dma = []
            for b in range(ppw_w):
                dma += dma_w(b, P)
            for b in range(ppt):
                dma += dma_tok(b, half)
            post = [f"s_add_u32 s{S_WK}, s{S_WK}, s{S_WSTEP}", f"s_add_u32 s{S_WSTP}, s{S_WSTP}, 1"]
            rd = reads(nxt, (P + 1) & 1, (P + 1) & 3)
            seq = book + dma + post + rd
            mf = []
            for j in range(nF):
                for i in range(nT):
                    if typ == 0:
                        mf.append(f"v_mfma_f32_16x16x32_bf16 {acc(j,i)}, {ff(cur,j)}, {tf(cur,i)}, {acc(j,i)}")
                    else:
                        mf.append(f"v_mfma_f32_16x16x32_bf16 {acc(j,i)}, {tf(cur,i)}, {ff(cur,j)}, {acc(j,i)}")
            nm = len(mf)
            usable = nm - (4 if NW == 8 else 8)
            k = 0
            for mi_, m in enumerate(mf):
                A(m)
                tgt = min(len(seq), ((mi_ + 1) * len(seq) + usable - 1) // usable)
                while k < tgt:
                    A(seq[k]); k += 1
            assert k == len(seq)
            if P & 1:
                A(f"s_add_u32 s{S_STEP}, s{S_STEP}, 2")
                A(f"s_cmp_ge_u32 s{S_STEP}, s{S_NST}")
                if P == 1:
                    A(f"s_cbranch_scc1 {name}_epi{typ}")
                else:
                    A(f"s_cbranch_scc0 {name}_loop{typ}")
        A.label(f"{name}_epi{typ}")
        if stamps:
            A(f"s_memtime s[{S_STAMP+4}:{S_STAMP+5}]")
        A("s_waitcnt lgkmcnt(0)")
        A("s_nop 7")
        A("s_nop 7")
        A(f"s_and_b32 s{S_T0}, s{S_W}, 1")
        A(f"s_lshr_b32 s{S_T1}, s{S_W}, 1")
        A(f"s_lshl_b32 s{S_T2}, s{S_MI}, 3")
        A(f"s_lshl_b32 s{S_T0}, s{S_T0}, 2")
        A(f"s_add_u32 s{S_T2}, s{S_T2}, s{S_T0}")
        A(f"s_lshl_b32 s{S_T2}, s{S_T2}, 14")
        A(f"v_and_b32 v{V_T0}, 15, v{L}")
        A(f"v_lshrrev_b32 v{V_T1}, 4, v{L}")
        A(f"v_lshrrev_b32 v{V_T2}, 1, v{V_T1}")
        A(f"v_and_b32 v{V_T1}, 1, v{V_T1}")
        pk = 0
        def rd_acc(j, i, r):
            if useA:
                return None
            return ACC + accr(j, i, r)
        def emit_pack(srcs, dst):
            if useA:
                tmp = V_PK + 8
                for e, (j, i, r) in enumerate(srcs):
                    A(f"v_accvgpr_read_b32 v{tmp+e}, a{ACC+accr(j,i,r)}")
                for e in range(4):
                    A(f"v_cvt_pk_bf16_f32 v{dst+e}, v{tmp+2*e}, v{tmp+2*e+1}")
            else:
                for e in range(4):
                    A(f"v_cvt_pk_bf16_f32 v{dst+e}, v{ACC+accr(*srcs[2*e])}, v{ACC+accr(*srcs[2*e+1])}")
        if typ == 0:
            assert not useA
            A(f"s_cmp_eq_u32 s{S_SCALE}, 0")
            A(f"s_cbranch_scc1 {name}_noscale")
            for i_ in range(nF * nT * 4):
                A(f"v_mul_f32 v{ACC+i_}, s{S_SCALE}, v{ACC+i_}")
            A.label(f"{name}_noscale")
            A(f"v_lshlrev_b32 v{V_T2}, 10, v{V_T2}")
            A(f"v_lshl_add_u32 v{V_T2}, v{V_T1}, 9, v{V_T2}")
            A(f"v_and_b32 v{V_T1}, 7, v{V_T0}")
            A(f"v_lshrrev_b32 v{V_T0}, 3, v{V_T0}")
            A(f"v_lshl_add_u32 v{V_T1}, v{V_T0}, 4, v{V_T1}")
            A(f"v_lshl_add_u32 v{V_ST}, v{V_T1}, 4, v{V_T2}")
            A(f"s_mul_i32 s{S_T1}, s{S_T1}, {nF//2*2048}")
            A(f"s_add_u32 s{S_T2}, s{S_T2}, s{S_T1}")
            for z in range(4):
                for par in range(2):
                    i = 2 * z + par
                    for jj in range(nF // 2):
                        dst = V_PK + 4 * (pk & 1); pk += 1
                        srcs = [(2*jj, i, r) for r in range(4)] + [(2*jj+1, i, r) for r in range(4)]
                        emit_pack(srcs, dst)
                        imm = par * 128 + (jj & 1) * 2048
                        extra = (jj >> 1) * 4096
                        if extra:
                            A(f"s_add_u32 s{S_T3}, s{S_T2}, {extra}")
                            A(f"buffer_store_dwordx4 {v(dst,4)}, v{V_ST}, s[{S_OSRD}:{S_OSRD+3}], s{S_T3} offen offset:{imm}")
                        else:
                            A(f"buffer_store_dwordx4 {v(dst,4)}, v{V_ST}, s[{S_OSRD}:{S_OSRD+3}], s{S_T2} offen offset:{imm}")
                A(f"s_add_u32 s{S_T2}, s{S_T2}, 16384")
        else:
            A(f"v_lshlrev_b32 v{V_T2}, 13, v{V_T2}")
            A(f"v_lshl_add_u32 v{V_T2}, v{V_T1}, 9, v{V_T2}")
            A(f"v_lshl_add_u32 v{V_ST}, v{V_T0}, 4, v{V_T2}")
            A(f"s_mul_i32 s{S_T1}, s{S_T1}, {nF//2*1024}")
            A(f"s_add_u32 s{S_T2}, s{S_T2}, s{S_T1}")
            for z in range(4):
                for j in range(nF):
                    dst = V_PK + 4 * (pk & 1); pk += 1
                    srcs = [(j, 2*z, r) for r in range(4)] + [(j, 2*z+1, r) for r in range(4)]
                    emit_pack(srcs, dst)
                    imm = (j >> 1) * 1024 + (j & 1) * 256
                    A(f"buffer_store_dwordx4 {v(dst,4)}, v{V_ST}, s[{S_OSRD}:{S_OSRD+3}], s{S_T2} offen offset:{imm}")
                A(f"s_add_u32 s{S_T2}, s{S_T2}, 16384")
        A(f"s_branch {name}_fin")
    A.label(f"{name}_fin")
    if stamps:
        A("s_waitcnt vmcnt(0)")
        A(f"s_memtime s[{S_STAMP+6}:{S_STAMP+7}]")
        A("s_memrealtime s[58:59]")
        A("s_load_dwordx2 s[76:77], s[0:1], 88")
        A("s_waitcnt lgkmcnt(0)")
        A(f"s_cmp_eq_u32 s{S_W}, 0")
        A(f"s_cbranch_scc0 {name}_end")
        A(f"s_lshl_b32 s{S_T0}, s2, 6")
        A(f"s_add_u32 s{S_T0}, s{S_T0}, {200*MB}")
        A(f"s_add_u32 s76, s76, s{S_T0}")
        A("s_addc_u32 s77, s77, 0")
        for q in range(4):
            A(f"v_mov_b32 v{V_PK+q}, s{S_STAMP+2*q}")
        A(f"v_mov_b32 v{V_PK+4}, s58")
        A(f"v_mov_b32 v{V_T0}, 0")
        A(f"global_store_dwordx4 v{V_T0}, {v(V_PK,4)}, s[76:77]")
        A(f"global_store_dword v{V_T0}, v{V_PK+4}, s[76:77] offset:16")
    A.label(f"{name}_end")
    A("s_endpgm")
    if useA:
        return dict(vgpr=256 + 256, accum=256, nv=NV)
    assert NV <= 256, NV
    return dict(vgpr=NV, accum=(NV + 3) // 4 * 4, nv=NV)

if __name__ == "__main__":
    import sys
    A = Asm()
    A.raw('.amdgcn_target "amdgcn-amd-amdhsa--gfx950"')
    infos = []
    for NW in (8,):
        nm = f"k1w{NW}_kernel"
        inf = gen_k1(A, nm, NW=NW, stamps=True)
        infos.append((nm, inf))
        print(nm, inf)
    for nm, inf in infos:
        kernel_desc(A, nm, inf["vgpr"], accum=inf["accum"])
    open("k1.s", "w").write(A.text() + metadata([(nm, inf["vgpr"]) for nm, inf in infos]))
```

```python
from asmlib import *
MB = 1 << 20
WS_CTX = 56*MB
WS_CTXB = 72*MB
WS_PART = 80*MB
PART_WAVE = 33*1024
PART_ROLE = 4*PART_WAVE
THR = 0x47800000

def gen_k2(A, name, stamps=False, split=17, pre_hook=None):
    O = 0
    S0 = 128
    NEGM = 192
    P = 208
    V_L16 = 224
    V_KRD = 225
    V_VRD = 226
    V_LSUM = 228
    V_LT = 229
    V_E = 234
    V_DELTA = 242
    V_D0, V_D1 = 243, 244
    V_NINF = 245
    V_T0, V_T1, V_T2, V_T3 = 246, 247, 248, 249
    V_M = 250
    V_LANE = 251
    AQ = 0
    AR = 64
    NA = 144
    R, D = 16, 12
    def Sreg(p, sub, r): return S0 + p*32 + sub*16 + r
    def ring(n): return a(AR + (n % R)*4, 4)
    S_KSRD, S_VSRD, S_QSRD, S_CSRD, S_PSRD = 8, 12, 16, 20, 24
    S_W = 28
    S_HEAD, S_QB, S_T, S_T1, S_TMASK = 29, 30, 31, 32, 33
    S_KW = 34
    S_VW = 35
    S_KR = 36
    S_VR = 37
    S_KT = 38
    S_VT = 39
    S_WOFF = 40
    S_A, S_B, S_C, S_Dd = 41, 42, 43, 44
    S_KOFF, S_VOFF = 45, 46
    S_JOB = 47
    S_PAIR = 48
    S_RET = 49
    S_I = 50
    S_THR = 51
    S_MSK = 52
    S_DBG = 60
    S_WS = 62
    S_STAMP = 64
    S_UEND = 72
    S_WOFFV = 73
    KBASE, VBASE = 0, 65536

    kernel_begin(A, name)
    if stamps: A(f"s_memtime s[{S_STAMP}:{S_STAMP+1}]")
    A("s_cmp_ge_u32 s2, 256")
    A(f"s_cbranch_scc1 {name}_end")
    A(f"s_load_dwordx2 s[{S_DBG}:{S_DBG+1}], s[0:1], 80")
    A(f"s_load_dwordx2 s[{S_WS}:{S_WS+1}], s[0:1], 88")
    A(f"v_and_b32 v{V_LANE}, 63, v0")
    A(f"v_lshrrev_b32 v{V_T0}, 6, v0")
    A(f"v_lshlrev_b32 v{V_L16}, 4, v{V_LANE}")
    A(f"v_readfirstlane_b32 s{S_W}, v{V_T0}")
    A(f"v_mov_b32 v{V_NINF}, 0xff800000")
    A(f"s_mov_b32 s{S_THR}, {THR}")
    A(f"s_and_b32 s{S_A}, s2, 7")
    A(f"s_lshr_b32 s{S_B}, s2, 3")
    A(f"s_and_b32 s{S_C}, s{S_B}, 1")
    A(f"s_lshl_b32 s{S_HEAD}, s{S_A}, 1")
    A(f"s_add_u32 s{S_HEAD}, s{S_HEAD}, s{S_C}")
    A(f"s_lshr_b32 s{S_B}, s{S_B}, 1")
    A(f"s_lshr_b32 s{S_I}, s{S_B}, 1")
    A(f"s_and_b32 s{S_JOB}, s{S_B}, 1")
    A(f"s_lshl_b32 s{S_PAIR}, s{S_HEAD}, 3")
    A(f"s_add_u32 s{S_PAIR}, s{S_PAIR}, s{S_I}")
    A(f"s_lshl_b32 s{S_WOFF}, s{S_W}, 13")
    A(f"s_add_u32 s{S_WOFFV}, s{S_WOFF}, {VBASE}")
    A("s_waitcnt lgkmcnt(0)")
    def srd(reg, off, size):
        A(f"s_add_u32 s{reg}, s{S_WS}, {off}")
        A(f"s_addc_u32 s{reg+1}, s{S_WS+1}, 0")
        A(f"s_mov_b32 s{reg+2}, {size}")
        A(f"s_mov_b32 s{reg+3}, 0x20000")
    A(f"s_lshl_b32 s{S_A}, s{S_HEAD}, 20")
    srd(S_QSRD, f"s{S_A}", MB)
    A(f"s_add_u32 s{S_A}, s{S_A}, {16*MB}")
    srd(S_KSRD, f"s{S_A}", MB)
    A(f"s_add_u32 s{S_A}, s{S_A}, {16*MB}")
    srd(S_VSRD, f"s{S_A}", MB)
    srd(S_CSRD, WS_CTX, 16*MB)
    A(f"s_mul_i32 s{S_A}, s{S_PAIR}, {2*PART_ROLE}")
    A(f"s_add_u32 s{S_A}, s{S_A}, {WS_PART}")
    srd(S_PSRD, f"s{S_A}", 2*PART_ROLE)
    if pre_hook: pre_hook(A, name, S_W, S_WS, V_L16, V_LANE, V_NINF)

    A.label(f"{name}_job")
    A(f"s_sub_u32 s{S_QB}, 15, s{S_I}")
    A(f"s_mov_b32 s{S_T}, 0")
    A(f"s_mov_b32 s{S_T1}, {split}")
    A(f"s_cmp_eq_u32 s{S_JOB}, 0")
    A(f"s_cbranch_scc1 {name}_jobset")
    A(f"s_mov_b32 s{S_T}, {split}")
    A(f"s_lshl_b32 s{S_T1}, s{S_QB}, 1")
    A(f"s_add_u32 s{S_T1}, s{S_T1}, 2")
    A(f"s_cmp_eq_u32 s{S_JOB}, 1")
    A(f"s_cbranch_scc1 {name}_jobset")
    A(f"s_mov_b32 s{S_QB}, s{S_I}")
    A(f"s_mov_b32 s{S_T}, 0")
    A(f"s_lshl_b32 s{S_T1}, s{S_QB}, 1")
    A(f"s_add_u32 s{S_T1}, s{S_T1}, 2")
    A.label(f"{name}_jobset")
    A(f"s_lshl_b32 s{S_TMASK}, s{S_QB}, 1")
    A(f"s_sub_u32 s{S_UEND}, s{S_T1}, 1")
    A(f"s_min_u32 s{S_UEND}, s{S_UEND}, s{S_TMASK}")
    A(f"s_lshl_b32 s{S_A}, s{S_QB}, 2")
    A(f"s_add_u32 s{S_A}, s{S_A}, s{S_W}")
    A(f"s_lshl_b32 s{S_B}, s{S_A}, 14")
    for g4 in range(4):
        for q in range(4):
            A(f"buffer_load_dwordx4 {a(AQ + (g4*4+q)*4, 4)}, v{V_L16}, s[{S_QSRD}:{S_QSRD+3}], s{S_B} offen offset:{q*1024}")
        A(f"s_add_u32 s{S_B}, s{S_B}, 4096")
    A(f"s_lshl_b32 s{S_A}, s{S_A}, 5")
    A(f"v_and_b32 v{V_T0}, 31, v{V_LANE}")
    A(f"v_lshrrev_b32 v{V_T1}, 5, v{V_LANE}")
    A(f"v_lshlrev_b32 v{V_T1}, 2, v{V_T1}")
    A(f"v_sub_u32 v{V_T0}, v{V_T0}, v{V_T1}")
    A(f"v_add_u32 v{V_DELTA}, s{S_A}, v{V_T0}")

    def dma_half(isV, half):
        srd_reg = S_VSRD if isV else S_KSRD
        s_tile = S_VT if isV else S_KT
        s_slot = S_VW if isV else S_KW
        tmpoff = S_VOFF if isV else S_KOFF
        woff = S_WOFFV if isV else S_WOFF
        out = []
        if half == 0:
            out.append(f"s_cmp_lt_u32 s{s_tile}, s{S_T1}\ns_cselect_b32 s{srd_reg+2}, {MB}, 0")
            out.append(f"s_lshl_b32 s{tmpoff}, s{s_tile}, 15")
            out.append(f"s_add_u32 m0, s{s_slot}, s{woff}")
            out.append(f"s_add_u32 s{tmpoff}, s{tmpoff}, s{S_WOFF}")
        else:
            out.append(f"s_add_u32 m0, s{s_slot}, s{woff}")
            out.append(f"s_add_u32 s{tmpoff}, s{tmpoff}, 4096")
            out.append(f"s_add_u32 m0, m0, 4096")
            out.append("s_nop 0")
        for q in range(4):
            out.append(f"buffer_load_dwordx4 v{V_L16}, s[{srd_reg}:{srd_reg+3}], s{tmpoff} offen offset:{q*1024} lds")
        if half == 1:
            if isV:
                out += [f"s_add_u32 s{S_VT}, s{S_VT}, 1", f"s_add_u32 s{S_VW}, s{S_VW}, 32768",
                        f"s_cmp_eq_u32 s{S_VW}, {3*32768}\ns_cselect_b32 s{S_VW}, 0, s{S_VW}"]
            else:
                out += [f"s_add_u32 s{S_KT}, s{S_KT}, 1", f"s_xor_b32 s{S_KW}, s{S_KW}, 32768"]
        return out
    def dma_full(isV): return dma_half(isV, 0) + dma_half(isV, 1)

    A("s_barrier")
    A(f"s_mov_b32 s{S_KT}, s{S_T}")
    A(f"s_mov_b32 s{S_VT}, s{S_T}")
    A(f"s_mov_b32 s{S_KW}, 0")
    A(f"s_mov_b32 s{S_VW}, 0")
    for x in dma_full(0): A(x)
    for x in dma_full(1): A(x)
    for x in dma_full(0): A(x)
    for x in dma_full(1): A(x)
    for i in range(128): A(f"v_mov_b32 v{O+i}, 0")
    A(f"v_mov_b32 v{V_LSUM}, 0")
    A("s_waitcnt vmcnt(24)")
    A("s_barrier")
    if stamps: A(f"s_memtime s[{S_STAMP+2}:{S_STAMP+3}]")
    A(f"v_mov_b32 v{V_KRD}, v{V_L16}")
    for n in range(8):
        A(f"ds_read_b128 {ring(n)}, v{V_KRD} offset:{n*1024}")
    for n in range(32):
        sub, sp = n >> 4, n & 15
        if n + 8 < 32:
            A(f"ds_read_b128 {ring(n+8)}, v{V_KRD} offset:{(n+8)*1024}")
            A(f"s_waitcnt lgkmcnt(8)")
        else:
            A(f"s_waitcnt lgkmcnt({31-n})")
        dst = v(Sreg(0, sub, 0), 16)
        A(f"v_mfma_f32_32x32x16_bf16 {dst}, {ring(n)}, {a(AQ+sp*4,4)}, {'0' if sp == 0 else dst}")
    A("s_waitcnt vmcnt(8)")
    A("s_barrier")
    for x in dma_half(0, 0): A(x)
    A(f"s_mov_b32 s{S_KR}, 32768")
    A(f"s_mov_b32 s{S_VR}, 0")
    A(f"v_add_u32 v{V_KRD}, s{S_KR}, v{V_L16}")
    A(f"v_add_u32 v{V_VRD}, {VBASE}, v{V_L16}")
    for n in range(D):
        A(f"ds_read_b128 {ring(n)}, v{V_KRD} offset:{n*1024}")

    def mask_instrs(p):
        out = []
        out.append(f"s_lshl_b32 s{S_A}, s{S_T}, 6")
        out.append(f"v_subrev_u32 v{V_D0}, s{S_A}, v{V_DELTA}")
        out.append(f"v_subrev_u32 v{V_D1}, 32, v{V_D0}")
        pend = []
        k = 0
        for sub in range(2):
            for r in range(16):
                cst = (r & 3) + 8 * (r >> 2)
                sp = S_MSK + 2 * (k % 4); k += 1
                out.append(f"v_cmp_ge_i32 s[{sp}:{sp+1}], v{V_D0 if sub == 0 else V_D1}, {cst}")
                pend.append(f"v_cndmask_b32 v{Sreg(p,sub,r)}, v{V_NINF}, v{Sreg(p,sub,r)}, s[{sp}:{sp+1}]")
                if len(pend) == 4:
                    out.append(pend.pop(0))
        out.append("s_nop 1")
        out += pend
        return out
    def max_instrs(p):
        out = []
        regs = [Sreg(p, sub, r) for sub in range(2) for r in range(16)]
        out.append(f"v_max3_f32 v{V_T0}, v{regs[0]}, v{regs[1]}, v{regs[2]}")
        out.append(f"v_max3_f32 v{V_T1}, v{regs[3]}, v{regs[4]}, v{regs[5]}")
        i = 6
        tgl = 0
        while i + 1 < 32:
            t = V_T0 if tgl == 0 else V_T1
            out.append(f"v_max3_f32 v{t}, v{t}, v{regs[i]}, v{regs[i+1]}")
            i += 2; tgl ^= 1
        out.append(f"v_max_f32 v{V_T0}, v{V_T0}, v{V_T1}")
        out.append(f"v_mov_b32 v{V_T1}, v{V_T0}")
        out.append("s_nop 1")
        out.append(f"v_permlane32_swap_b32 v{V_T0}, v{V_T1}")
        out.append("s_nop 1")
        out.append(f"v_max_f32 v{V_T0}, v{V_T0}, v{V_T1}")
        return out
    A("s_nop 7")
    for x in mask_instrs(0): A(x)
    for x in max_instrs(0): A(x)
    A(f"v_mov_b32 v{V_T1}, 0xf149f2ca")
    A(f"v_cmp_gt_f32 vcc, v{V_T0}, v{V_T1}")
    A("s_nop 1")
    A(f"v_cndmask_b32 v{V_M}, 0, v{V_T0}, vcc")
    for sub in range(2):
        for r in range(16):
            A(f"v_sub_f32 v{Sreg(0,sub,r)}, v{Sreg(0,sub,r)}, v{V_M}")
    for r in range(16):
        A(f"v_sub_f32 v{NEGM+r}, 0, v{V_M}")
    if stamps: A(f"s_memtime s[{S_STAMP+4}:{S_STAMP+5}]")
    A(f"s_branch {name}_dispatch0")

    def dispatch(p):
        A.label(f"{name}_dispatch{p}")
        A(f"s_cmp_lt_u32 s{S_T}, s{S_UEND}")
        A(f"s_cbranch_scc1 {name}_body_{p}_0_1")
        A(f"s_add_u32 s{S_A}, s{S_T}, 1")
        A(f"s_cmp_lt_u32 s{S_A}, s{S_T1}")
        A(f"s_cbranch_scc1 {name}_body_{p}_1_1")
        A(f"s_cmp_ge_u32 s{S_T}, s{S_TMASK}")
        A(f"s_cbranch_scc1 {name}_body_{p}_1_0")
        A(f"s_branch {name}_body_{p}_0_0")

    def finish_pair(qr, f0, f1):
        o = []
        acc0, acc1 = V_LT + (qr % 2) * 2, V_LT + (qr % 2) * 2 + 1
        if qr < 2:
            o.append(f"v_mov_b32 v{acc0}, v{f0}")
            o.append(f"v_mov_b32 v{acc1}, v{f1}")
        else:
            o.append(f"v_add_f32 v{acc0}, v{acc0}, v{f0}")
            o.append(f"v_add_f32 v{acc1}, v{acc1}, v{f1}")
        o.append(f"v_cvt_pk_bf16_f32 v{P+qr}, v{f0}, v{f1}")
        return o
    def softmax_instrs(p, masked):
        out = []
        if masked:
            out += mask_instrs(p)
        seq = []
        for pr in range(16):
            sub, r = pr >> 3, (pr & 7) * 2
            e0, e1 = V_E + (pr % 4) * 2, V_E + (pr % 4) * 2 + 1
            seq.append(f"v_exp_f32 v{e0}, v{Sreg(p,sub,r)}")
            seq.append(f"v_exp_f32 v{e1}, v{Sreg(p,sub,r+1)}")
            if pr > 0:
                qr = pr - 1
                seq += finish_pair(qr, V_E + (qr % 4) * 2, V_E + (qr % 4) * 2 + 1)
        seq += ["s_nop 0"] + finish_pair(15, V_E + 6, V_E + 7)
        out += seq
        out.append(f"v_add_f32 v{V_LT}, v{V_LT}, v{V_LT+1}")
        out.append(f"v_add_f32 v{V_LT+2}, v{V_LT+2}, v{V_LT+3}")
        out.append(f"v_add_f32 v{V_LT}, v{V_LT}, v{V_LT+2}")
        return out
    def ret_id(p, masked, nxt): return p * 4 + int(masked) * 2 + int(nxt)
    def check(p, masked, nxt):
        A(f"v_cmp_lt_f32 vcc, s{S_THR}, v{V_LT}")
        A(f"s_mov_b32 s{S_RET}, {ret_id(p, masked, nxt)}")
        A(f"s_cbranch_vccnz {name}_slow{p}")
        A.label(f"{name}_ret{ret_id(p, masked, nxt)}")
        A(f"v_add_f32 v{V_LSUM}, v{V_LSUM}, v{V_LT}")

    def spread(slots, ins, s0, s1):
        span = s1 - s0 + 1
        for k, x in enumerate(ins):
            slots[s0 + (k * span) // len(ins)].append(x)

    def emit_body(p, masked, nxt):
        A.label(f"{name}_body_{p}_{int(masked)}_{int(nxt)}")
        q = p ^ 1
        sm = softmax_instrs(p, masked)
        if nxt:
            mf = []
            for n in range(32):
                sub, sp = n >> 4, n & 15
                dst = v(Sreg(q, sub, 0), 16)
                c = v(NEGM, 16) if sp == 0 else dst
                mf.append(f"v_mfma_f32_32x32x16_bf16 {dst}, {ring(n)}, {a(AQ+sp*4,4)}, {c}")
            for n in range(32):
                u, dt = n >> 3, n & 7
                mf.append(f"v_mfma_f32_32x32x16_bf16 {v(O+dt*16,16)}, {ring(32+n)}, {v(P+u*4,4)}, {v(O+dt*16,16)}")
            slots = [[] for _ in range(64)]
            pre = [[] for _ in range(64)]
            BAR = 55
            for i in range(52):
                f = i + D
                if f < 32: slots[i].append(f"ds_read_b128 {ring(f)}, v{V_KRD} offset:{f*1024}")
                else: slots[i].append(f"ds_read_b128 {ring(f)}, v{V_VRD} offset:{(f-32)*1024}")
            for i in range(0, 56, 4):
                if i <= 48: pre[i].append(f"s_waitcnt lgkmcnt({D-4})")
                else: pre[i].append(f"s_waitcnt lgkmcnt(4)")
            pre[52] = ["s_waitcnt lgkmcnt(8)"]
            kn = [f"ds_read_b128 {ring(f)}, v{V_KRD} offset:{f*1024}" for f in range(D)]
            for f in range(8): slots[56 + f // 2].append(kn[f])
            for f in range(8, 12): slots[60 + (f - 8)].append(kn[f])
            spread(slots, sm, 0, 30)
            spread(slots, dma_half(0, 1), 1, 12)
            spread(slots, dma_full(1), 14, 44)
            slots[36].append(f"s_xor_b32 s{S_KR}, s{S_KR}, 32768")
            slots[37].append(f"v_add_u32 v{V_KRD}, s{S_KR}, v{V_L16}")
            spread(slots, dma_half(0, 0), 56, 62)
            bk = [f"s_add_u32 s{S_VR}, s{S_VR}, 32768", f"s_cmp_eq_u32 s{S_VR}, {3*32768}",
                  f"s_cselect_b32 s{S_VR}, 0, s{S_VR}", f"s_add_u32 s{S_B}, s{S_VR}, {VBASE}",
                  f"v_add_u32 v{V_VRD}, s{S_B}, v{V_L16}"]
            slots[52] += bk[:3]; slots[53] += bk[3:]
            slots[54].append(f"s_add_u32 s{S_T}, s{S_T}, 1")
            for i in range(64):
                for x in pre[i]: A(x)
                if i == 32: check(p, masked, nxt)
                A(mf[i])
                for x in slots[i]: A(x)
                if i == BAR:
                    A("s_waitcnt vmcnt(8) lgkmcnt(0)")
                    A("s_barrier")
            if not masked:
                A(f"s_cmp_lt_u32 s{S_T}, s{S_UEND}")
                A(f"s_cbranch_scc1 {name}_body_{q}_0_1")
            A(f"s_branch {name}_dispatch{q}")
        else:
            A("s_waitcnt lgkmcnt(0)")
            for n in range(R):
                A(f"ds_read_b128 {ring(n)}, v{V_VRD} offset:{n*1024}")
            for x in sm: A(x)
            check(p, masked, nxt)
            for n in range(32):
                u, dt = n >> 3, n & 7
                if n == 0: A("s_waitcnt lgkmcnt(0)")
                if n == 16: A("s_waitcnt lgkmcnt(8)")
                if n == 24: A("s_waitcnt lgkmcnt(0)")
                A(f"v_mfma_f32_32x32x16_bf16 {v(O+dt*16,16)}, {ring(n)}, {v(P+u*4,4)}, {v(O+dt*16,16)}")
                if n + R < 32:
                    A(f"ds_read_b128 {ring(n+R)}, v{V_VRD} offset:{(n+R)*1024}")
            A(f"s_branch {name}_epi")
    dispatch(0)
    dispatch(1)
    for p in range(2):
        for masked in (False, True):
            for nxt in (True, False):
                emit_body(p, masked, nxt)
    for p in range(2):
        q = p ^ 1
        A.label(f"{name}_slow{p}")
        A("s_nop 7")
        A("s_nop 7")
        for x in max_instrs(p): A(x)
        A(f"v_max_f32 v{V_T0}, 0, v{V_T0}")
        A(f"v_sub_f32 v{V_T1}, 0, v{V_T0}")
        A(f"v_exp_f32 v{V_T1}, v{V_T1}")
        A(f"v_add_f32 v{V_M}, v{V_M}, v{V_T0}")
        for sub in range(2):
            for r in range(16):
                A(f"v_sub_f32 v{Sreg(p,sub,r)}, v{Sreg(p,sub,r)}, v{V_T0}")
                A(f"v_sub_f32 v{Sreg(q,sub,r)}, v{Sreg(q,sub,r)}, v{V_T0}")
        for r in range(16):
            A(f"v_sub_f32 v{NEGM+r}, 0, v{V_M}")
        A(f"v_mul_f32 v{V_LSUM}, v{V_LSUM}, v{V_T1}")
        for i in range(128):
            A(f"v_mul_f32 v{O+i}, v{O+i}, v{V_T1}")
        for x in softmax_instrs(p, False): A(x)
        A("s_nop 1")
        for mm in range(2):
            for nn in range(2):
                rid = p * 4 + mm * 2 + nn
                if mm == 1 and nn == 1:
                    A(f"s_branch {name}_ret{rid}")
                else:
                    A(f"s_cmp_eq_u32 s{S_RET}, {rid}")
                    A(f"s_cbranch_scc1 {name}_ret{rid}")
    A.label(f"{name}_epi")
    if stamps: A(f"s_memtime s[{S_STAMP+6}:{S_STAMP+7}]")
    A("s_waitcnt vmcnt(0)")
    A("s_nop 7")
    A("s_nop 7")
    A(f"v_mov_b32 v{V_T0}, v{V_LSUM}")
    A(f"v_mov_b32 v{V_T1}, v{V_LSUM}")
    A("s_nop 1")
    A(f"v_permlane32_swap_b32 v{V_T0}, v{V_T1}")
    A("s_nop 1")
    A(f"v_add_f32 v{V_LSUM}, v{V_T0}, v{V_T1}")
    A(f"s_cmp_eq_u32 s{S_JOB}, 2")
    A(f"s_cbranch_scc1 {name}_final")
    A(f"v_mov_b32 v{V_T1}, 0xf149f2ca")
    A(f"v_cmp_lt_f32 vcc, 0, v{V_LSUM}")
    A("s_nop 1")
    A(f"v_cndmask_b32 v{V_M}, v{V_T1}, v{V_M}, vcc")
    A(f"s_lshr_b32 s{S_A}, s{S_PAIR}, 2")
    A(f"s_lshl_b32 s{S_A}, s{S_A}, 2")
    A(f"s_and_b32 s{S_B}, s{S_PAIR}, 3")
    A(f"s_lshl_b32 s{S_B}, s{S_B}, 3")
    A(f"v_mov_b32 v{V_T0}, s{S_A}")
    A("s_barrier")
    A(f"s_cmp_eq_u32 s{S_W}, 0")
    A(f"s_cbranch_scc0 {name}_peekdone")
    A(f"global_load_dword v{V_T1}, v{V_T0}, s[{S_DBG}:{S_DBG+1}] sc1")
    A("s_waitcnt vmcnt(0)")
    A(f"v_mov_b32 v{V_T2}, 0")
    A(f"ds_write_b32 v{V_T2}, v{V_T1}")
    A("s_waitcnt lgkmcnt(0)")
    A.label(f"{name}_peekdone")
    A("s_barrier")
    A(f"v_mov_b32 v{V_T2}, 0")
    A(f"ds_read_b32 v{V_T1}, v{V_T2}")
    A("s_waitcnt lgkmcnt(0)")
    A(f"v_readfirstlane_b32 s{S_C}, v{V_T1}")
    A("s_nop 3")
    A(f"s_lshr_b32 s{S_C}, s{S_C}, s{S_B}")
    A(f"s_and_b32 s{S_C}, s{S_C}, 0xff")
    A(f"s_cmp_eq_u32 s{S_C}, 1")
    A(f"s_cbranch_scc1 {name}_merge")
    A(f"s_mul_i32 s{S_C}, s{S_JOB}, {PART_ROLE}")
    A(f"s_mul_i32 s{S_Dd}, s{S_W}, {PART_WAVE}")
    A(f"s_add_u32 s{S_C}, s{S_C}, s{S_Dd}")
    for g4 in range(8):
        for qq in range(4):
            A(f"buffer_store_dwordx4 {v(O+(g4*4+qq)*4,4)}, v{V_L16}, s[{S_PSRD}:{S_PSRD+3}], s{S_C} offen offset:{qq*1024} sc1")
        A(f"s_add_u32 s{S_C}, s{S_C}, 4096")
    A(f"v_mov_b32 v{V_E}, v{V_M}")
    A(f"v_mov_b32 v{V_E+1}, v{V_LSUM}")
    A(f"v_lshrrev_b32 v{V_T2}, 1, v{V_L16}")
    A(f"buffer_store_dwordx2 {v(V_E,2)}, v{V_T2}, s[{S_PSRD}:{S_PSRD+3}], s{S_C} offen sc1")
    A("s_waitcnt vmcnt(0)")
    A("s_barrier")
    A(f"s_cmp_eq_u32 s{S_W}, 0")
    A(f"s_cbranch_scc0 {name}_adddone")
    A(f"s_lshl_b32 s{S_C}, 1, s{S_B}")
    A(f"v_mov_b32 v{V_T1}, s{S_C}")
    A("s_mov_b64 s[52:53], exec")
    A("s_mov_b64 exec, 1")
    A(f"global_atomic_add v{V_T1}, v{V_T0}, v{V_T1}, s[{S_DBG}:{S_DBG+1}] sc0 sc1")
    A("s_waitcnt vmcnt(0)")
    A(f"v_mov_b32 v{V_T2}, 0")
    A(f"ds_write_b32 v{V_T2}, v{V_T1}")
    A("s_waitcnt lgkmcnt(0)")
    A("s_mov_b64 exec, s[52:53]")
    A.label(f"{name}_adddone")
    A("s_barrier")
    A(f"v_mov_b32 v{V_T2}, 0")
    A(f"ds_read_b32 v{V_T1}, v{V_T2}")
    A("s_waitcnt lgkmcnt(0)")
    A(f"v_readfirstlane_b32 s{S_C}, v{V_T1}")
    A("s_nop 3")
    A(f"s_lshr_b32 s{S_C}, s{S_C}, s{S_B}")
    A(f"s_and_b32 s{S_C}, s{S_C}, 0xff")
    A(f"s_cmp_eq_u32 s{S_C}, 1")
    A(f"s_cbranch_scc0 {name}_jobdone")
    A.label(f"{name}_merge")
    A(f"s_xor_b32 s{S_C}, s{S_JOB}, 1")
    A(f"s_mul_i32 s{S_C}, s{S_C}, {PART_ROLE}")
    A(f"s_mul_i32 s{S_Dd}, s{S_W}, {PART_WAVE}")
    A(f"s_add_u32 s{S_C}, s{S_C}, s{S_Dd}")
    A(f"s_add_u32 s{S_Dd}, s{S_C}, 32768")
    A(f"v_lshrrev_b32 v{V_T2}, 1, v{V_L16}")
    A(f"buffer_load_dwordx2 {v(V_E,2)}, v{V_T2}, s[{S_PSRD}:{S_PSRD+3}], s{S_Dd} offen sc1")
    for half in range(2):
        for g4 in range(4):
            for qq in range(4):
                A(f"buffer_load_dwordx4 {v(S0+(g4*4+qq)*4,4)}, v{V_L16}, s[{S_PSRD}:{S_PSRD+3}], s{S_C} offen offset:{qq*1024} sc1")
            A(f"s_add_u32 s{S_C}, s{S_C}, 4096")
        if half == 0:
            A("s_waitcnt vmcnt(16)")
            A(f"v_max_f32 v{V_T0}, v{V_M}, v{V_E}")
            A(f"v_sub_f32 v{V_T1}, v{V_M}, v{V_T0}")
            A(f"v_sub_f32 v{V_T3}, v{V_E}, v{V_T0}")
            A(f"v_exp_f32 v{V_T1}, v{V_T1}")
            A(f"v_exp_f32 v{V_T3}, v{V_T3}")
            A("s_nop 0")
            A(f"v_mul_f32 v{V_LSUM}, v{V_LSUM}, v{V_T1}")
            A(f"v_fma_f32 v{V_LSUM}, v{V_E+1}, v{V_T3}, v{V_LSUM}")
            for i in range(128):
                A(f"v_mul_f32 v{O+i}, v{O+i}, v{V_T1}")
        A("s_waitcnt vmcnt(0)")
        for i in range(64):
            A(f"v_fma_f32 v{O+half*64+i}, v{S0+i}, v{V_T3}, v{O+half*64+i}")
    A.label(f"{name}_final")
    A(f"v_rcp_f32 v{V_T0}, v{V_LSUM}")
    A(f"s_lshl_b32 s{S_A}, s{S_QB}, 2")
    A(f"s_add_u32 s{S_A}, s{S_A}, s{S_W}")
    A(f"s_lshl_b32 s{S_A}, s{S_A}, 18")
    A(f"s_lshl_b32 s{S_B}, s{S_HEAD}, 14")
    A(f"s_add_u32 s{S_A}, s{S_A}, s{S_B}")
    for dt in range(8):
        for r in range(16):
            A(f"v_mul_f32 v{O+dt*16+r}, v{O+dt*16+r}, v{V_T0}")
        tb = S0 + (dt % 4) * 8
        for e in range(8):
            A(f"v_cvt_pk_bf16_f32 v{tb+e}, v{O+dt*16+2*e}, v{O+dt*16+2*e+1}")
        imm = (dt & 1) * 2048
        A(f"buffer_store_dwordx4 {v(tb,4)}, v{V_L16}, s[{S_CSRD}:{S_CSRD+3}], s{S_A} offen offset:{imm}")
        A(f"buffer_store_dwordx4 {v(tb+4,4)}, v{V_L16}, s[{S_CSRD}:{S_CSRD+3}], s{S_A} offen offset:{imm+1024}")
        if dt & 1: A(f"s_add_u32 s{S_A}, s{S_A}, 4096")
    A.label(f"{name}_jobdone")
    A(f"s_cmp_eq_u32 s{S_JOB}, 1")
    A(f"s_cbranch_scc0 {name}_fin")
    A(f"s_mov_b32 s{S_JOB}, 2")
    A(f"s_branch {name}_job")
    A.label(f"{name}_fin")
    if stamps:
        A("s_waitcnt vmcnt(0)")
        A("s_memtime s[74:75]")
        A("s_memrealtime s[76:77]")
        A("s_waitcnt lgkmcnt(0)")
        A(f"s_cmp_eq_u32 s{S_W}, 0")
        A(f"s_cbranch_scc0 {name}_end")
        A(f"s_lshl_b32 s{S_A}, s2, 6")
        A(f"s_add_u32 s{S_A}, s{S_A}, {201*MB}")
        A(f"s_add_u32 s{S_WS}, s{S_WS}, s{S_A}")
        A(f"s_addc_u32 s{S_WS+1}, s{S_WS+1}, 0")
        for qq in range(4):
            A(f"v_mov_b32 v{S0+qq}, s{S_STAMP+2*qq}")
        A(f"v_mov_b32 v{S0+4}, s74")
        A(f"v_mov_b32 v{S0+5}, s76")
        A(f"v_mov_b32 v{V_T0}, 0")
        A(f"global_store_dwordx4 v{V_T0}, {v(S0,4)}, s[{S_WS}:{S_WS+1}]")
        A(f"global_store_dwordx2 v{V_T0}, {v(S0+4,2)}, s[{S_WS}:{S_WS+1}] offset:16")
    A.label(f"{name}_end")
    A("s_endpgm")
    return dict(vgpr=256 + NA, accum=256)

if __name__ == "__main__":
    A = Asm()
    A.raw('.amdgcn_target "amdgcn-amd-amdhsa--gfx950"')
    inf = gen_k2(A, "k2_kernel", stamps=True)
    kernel_desc(A, "k2_kernel", inf["vgpr"], accum=inf["accum"])
    open("k2.s", "w").write(A.text() + metadata([("k2_kernel", inf["vgpr"])]))
```

```python
from asmlib import *
MB = 1 << 20
WS_CTXB = 72*MB
def emit_btask(A, name, S_W, S_WS, V_L16, V_LANE, V_NINF):
    SV = 0
    PV = 144
    QV = 216
    OV = 226
    T0, T1, T2 = 242, 243, 244
    MX = 246
    LS = 247
    KA = 0
    VA = 72
    S_H, S_T = 80, 81
    QS, KS, VS, CS = 84, 88, 92, 96
    S_A, S_B, S_C = 78, 79, 82
    A(f"s_and_b32 s{S_H}, s2, 15")
    A(f"s_lshr_b32 s{S_T}, s2, 4")
    A(f"s_lshl_b32 s{S_T}, s{S_T}, 2")
    A(f"s_add_u32 s{S_T}, s{S_T}, s{S_W}")
    A(f"s_lshr_b32 s{S_A}, s{S_H}, 3")
    A(f"s_lshl_b32 s{S_A}, s{S_A}, 20")
    for reg, base in ((QS, 48), (KS, 50), (VS, 52)):
        A(f"s_add_u32 s{S_B}, s{S_A}, {base*MB}")
        A(f"s_add_u32 s{reg}, s{S_WS}, s{S_B}")
        A(f"s_addc_u32 s{reg+1}, s{S_WS+1}, 0")
        A(f"s_mov_b32 s{reg+2}, {MB}")
        A(f"s_mov_b32 s{reg+3}, 0x20000")
    A(f"s_add_u32 s{CS}, s{S_WS}, {WS_CTXB}")
    A(f"s_addc_u32 s{CS+1}, s{S_WS+1}, 0")
    A(f"s_mov_b32 s{CS+2}, {2*MB}")
    A(f"s_mov_b32 s{CS+3}, 0x20000")
    A(f"s_and_b32 s{S_C}, s{S_H}, 7")
    A(f"s_lshl_b32 s{S_A}, s{S_T}, 14")
    A(f"s_lshl_b32 s{S_B}, s{S_C}, 11")
    A(f"s_add_u32 s{S_A}, s{S_A}, s{S_B}")
    A(f"buffer_load_dwordx4 {v(QV,4)}, v{V_L16}, s[{QS}:{QS+3}], s{S_A} offen")
    A(f"buffer_load_dwordx4 {v(QV+4,4)}, v{V_L16}, s[{QS}:{QS+3}], s{S_A} offen offset:1024")
    for j in range(9):
        A(f"s_add_i32 s{S_A}, s{S_T}, {j-8}")
        A(f"s_max_i32 s{S_A}, s{S_A}, 0")
        A(f"s_lshl_b32 s{S_A}, s{S_A}, 14")
        A(f"s_lshl_b32 s{S_B}, s{S_C}, 11")
        A(f"s_add_u32 s{S_B}, s{S_B}, s{S_A}")
        A(f"buffer_load_dwordx4 {a(KA+j*8,4)}, v{V_L16}, s[{KS}:{KS+3}], s{S_B} offen")
        A(f"buffer_load_dwordx4 {a(KA+j*8+4,4)}, v{V_L16}, s[{KS}:{KS+3}], s{S_B} offen offset:1024")
    for j in range(9):
        A(f"s_add_i32 s{S_A}, s{S_T}, {j-8}")
        A(f"s_max_i32 s{S_A}, s{S_A}, 0")
        A(f"s_lshl_b32 s{S_A}, s{S_A}, 14")
        A(f"s_lshl_b32 s{S_B}, s{S_C}, 10")
        A(f"s_add_u32 s{S_B}, s{S_B}, s{S_A}")
        A(f"buffer_load_dwordx4 {a(VA+j*8,4)}, v{V_L16}, s[{VS}:{VS+3}], s{S_B} offen")
        A(f"s_add_u32 s{S_B}, s{S_B}, 8192")
        A(f"buffer_load_dwordx4 {a(VA+j*8+4,4)}, v{V_L16}, s[{VS}:{VS+3}], s{S_B} offen")
    A(f"v_and_b32 v{T0}, 31, v{V_LANE}")
    A(f"v_lshrrev_b32 v{T1}, 5, v{V_LANE}")
    A(f"v_lshlrev_b32 v{T2}, 2, v{T1}")
    A(f"v_sub_u32 v{T0}, v{T0}, v{T2}")
    A("s_waitcnt vmcnt(18)")
    A(f"v_cmp_eq_u32 vcc, 0, v{T1}")
    A("s_nop 1")
    A(f"v_cndmask_b32 v{QV+6}, 0, v{QV+6}, vcc")
    A(f"v_cndmask_b32 v{QV+7}, 0, v{QV+7}, vcc")
    A("s_nop 1")
    for j in range(9):
        d = v(SV + j*16, 16)
        A(f"v_mfma_f32_32x32x16_bf16 {d}, {a(KA+j*8,4)}, {v(QV,4)}, 0")
        A(f"v_mfma_f32_32x32x16_bf16 {d}, {a(KA+j*8+4,4)}, {v(QV+4,4)}, {d}")
    A("s_nop 7")
    A("s_nop 7")
    for j, op in ((0, "lt"), (8, "ge")):
        pend = []
        for r in range(16):
            cst = (r & 3) + 8 * (r >> 2)
            sp = 52 + 2 * (r % 4)
            A(f"v_cmp_{op}_i32 s[{sp}:{sp+1}], v{T0}, {cst}")
            pend.append(f"v_cndmask_b32 v{SV+j*16+r}, v{V_NINF}, v{SV+j*16+r}, s[{sp}:{sp+1}]")
            if len(pend) == 4: A(pend.pop(0))
        A("s_nop 1")
        for x in pend: A(x)
    for j in range(8):
        lab = A.newlabel(f"{name}_bv")
        A(f"s_cmp_ge_u32 s{S_T}, {8-j}")
        A(f"s_cbranch_scc1 {lab}")
        for r in range(16): A(f"v_mov_b32 v{SV+j*16+r}, v{V_NINF}")
        A.label(lab)
    regs = list(range(SV, SV + 144))
    accs = [MX, T1, T2, LS]
    for k in range(4):
        A(f"v_max3_f32 v{accs[k]}, v{regs[3*k]}, v{regs[3*k+1]}, v{regs[3*k+2]}")
    i = 12; k = 0
    while i + 1 < 144:
        A(f"v_max3_f32 v{accs[k%4]}, v{accs[k%4]}, v{regs[i]}, v{regs[i+1]}")
        i += 2; k += 1
    A(f"v_max3_f32 v{MX}, v{MX}, v{T1}, v{T2}")
    A(f"v_max_f32 v{MX}, v{MX}, v{LS}")
    A(f"v_mov_b32 v{T1}, v{MX}")
    A("s_nop 1")
    A(f"v_permlane32_swap_b32 v{MX}, v{T1}")
    A("s_nop 1")
    A(f"v_max_f32 v{MX}, v{MX}, v{T1}")
    for r in range(144):
        A(f"v_sub_f32 v{SV+r}, v{SV+r}, v{MX}")
    for r in range(144):
        A(f"v_exp_f32 v{SV+r}, v{SV+r}")
    A("s_nop 0")
    for r in range(72):
        A(f"v_cvt_pk_bf16_f32 v{PV+r}, v{SV+2*r}, v{SV+2*r+1}")
    sums = [LS, T1, T2, T0]
    for k in range(4):
        A(f"v_add_f32 v{sums[k]}, v{SV+2*k}, v{SV+2*k+1}")
    for r in range(8, 144):
        A(f"v_add_f32 v{sums[r%4]}, v{sums[r%4]}, v{SV+r}")
    A(f"v_add_f32 v{LS}, v{LS}, v{T1}")
    A(f"v_add_f32 v{T2}, v{T2}, v{T0}")
    A(f"v_add_f32 v{LS}, v{LS}, v{T2}")
    A(f"v_mov_b32 v{T1}, v{LS}")
    A("s_nop 1")
    A(f"v_permlane32_swap_b32 v{LS}, v{T1}")
    A("s_nop 1")
    A(f"v_add_f32 v{LS}, v{LS}, v{T1}")
    A("s_waitcnt vmcnt(0)")
    d = v(OV, 16)
    for j in range(9):
        for s_ in range(2):
            c = "0" if (j == 0 and s_ == 0) else d
            A(f"v_mfma_f32_32x32x16_bf16 {d}, {a(VA+j*8+4*s_,4)}, {v(PV+j*8+4*s_,4)}, {c}")
    A(f"v_rcp_f32 v{LS}, v{LS}")
    A("s_nop 7")
    A("s_nop 7")
    for r in range(16):
        A(f"v_mul_f32 v{OV+r}, v{OV+r}, v{LS}")
    A(f"v_lshrrev_b32 v{T1}, 5, v{V_LANE}")
    A(f"v_cmp_eq_u32 vcc, 0, v{T1}")
    A("s_nop 1")
    for r in range(12, 16):
        A(f"v_cndmask_b32 v{OV+r}, 0, v{OV+r}, vcc")
    for e in range(8):
        A(f"v_cvt_pk_bf16_f32 v{SV+e}, v{OV+2*e}, v{OV+2*e+1}")
    A(f"s_lshl_b32 s{S_A}, s{S_T}, 15")
    A(f"s_lshl_b32 s{S_B}, s{S_H}, 11")
    A(f"s_add_u32 s{S_A}, s{S_A}, s{S_B}")
    A(f"buffer_store_dwordx4 {v(SV,4)}, v{V_L16}, s[{CS}:{CS+3}], s{S_A} offen")
    A(f"buffer_store_dwordx4 {v(SV+4,4)}, v{V_L16}, s[{CS}:{CS+3}], s{S_A} offen offset:1024")
    A("s_nop 1")
```

```python
from asmlib import *
MB = 1 << 20
WS_CTX = 56*MB
WS_CTXB = 72*MB

def gen_k3(A, name, stamps=False):
    ACC = 0
    TR = 64
    FR = 96
    V_L16, V_W0, V_FA0, V_FA1, V_T0, V_T1, V_T2, V_LANE, V_ST = 112, 113, 114, 115, 116, 117, 118, 119, 120
    RED = 64
    NV = 128
    S_TSRD, S_WSRD, S_OSRD = 8, 12, 16
    S_W, S_MT, S_NT, S_TYPE = 20, 21, 22, 23
    S_TOFF0, S_TOFF1 = 24, 25
    S_WOFF = 26
    S_LB = 27
    S_A, S_B, S_C = 28, 29, 30
    S_Y = 31
    S_IT = 32
    S_WO = 40
    PD = 3
    def tfr(ks, tt): return v(TR + ((ks % 4) * 2 + tt) * 4, 4)
    def ffr(set_, ft, half=None):
        b = FR + (set_ * 2 + ft) * 4
        return v(b, 4) if half is None else v(b + 2 * half, 2)
    kernel_begin(A, name)
    A("s_cmp_ge_u32 s2, 256")
    A(f"s_cbranch_scc1 {name}_end")
    A("s_load_dwordx2 s[60:61], s[0:1], 40")
    A("s_load_dwordx2 s[62:63], s[0:1], 64")
    A("s_load_dwordx2 s[64:65], s[0:1], 72")
    A("s_load_dwordx2 s[66:67], s[0:1], 88")
    A(f"v_and_b32 v{V_LANE}, 63, v0")
    A(f"v_lshrrev_b32 v{V_T0}, 6, v0")
    A(f"v_lshlrev_b32 v{V_L16}, 4, v{V_LANE}")
    A(f"v_readfirstlane_b32 s{S_W}, v{V_T0}")
    A("s_waitcnt lgkmcnt(0)")
    A("s_cmp_ge_u32 s2, 224")
    A(f"s_cbranch_scc1 {name}_tb")
    A(f"s_and_b32 s{S_A}, s2, 7")
    A(f"s_lshr_b32 s{S_B}, s2, 3")
    A(f"s_and_b32 s{S_C}, s{S_B}, 3")
    A(f"s_lshl_b32 s{S_MT}, s{S_A}, 2")
    A(f"s_add_u32 s{S_MT}, s{S_MT}, s{S_C}")
    A(f"s_lshr_b32 s{S_NT}, s{S_B}, 2")
    A(f"s_mov_b32 s{S_TYPE}, 0")
    A(f"s_add_u32 s{S_TSRD}, s66, {WS_CTX}")
    A(f"s_addc_u32 s{S_TSRD+1}, s67, 0")
    A(f"s_mov_b32 s{S_TSRD+2}, {16*MB}")
    A(f"s_mov_b32 s{S_WSRD}, s60")
    A(f"s_mov_b32 s{S_WSRD+1}, s61")
    A(f"s_mov_b32 s{S_WSRD+2}, {4096*896}")
    A(f"s_lshl_b32 s{S_TOFF0}, s{S_MT}, 19")
    A(f"s_lshl_b32 s{S_A}, s{S_W}, 15")
    A(f"s_add_u32 s{S_TOFF0}, s{S_TOFF0}, s{S_A}")
    A(f"s_add_u32 s{S_TOFF1}, s{S_TOFF0}, {256*1024}")
    A(f"s_branch {name}_dec")
    A.label(f"{name}_tb")
    A(f"s_cmp_eq_u32 s{S_W}, 7")
    A(f"s_cbranch_scc1 {name}_end")
    A(f"s_sub_u32 s{S_MT}, s2, 224")
    A(f"s_mov_b32 s{S_NT}, s{S_W}")
    A(f"s_mov_b32 s{S_TYPE}, 1")
    A(f"s_add_u32 s{S_TSRD}, s66, {WS_CTXB}")
    A(f"s_addc_u32 s{S_TSRD+1}, s67, 0")
    A(f"s_mov_b32 s{S_TSRD+2}, {2*MB}")
    A(f"s_mov_b32 s{S_WSRD}, s62")
    A(f"s_mov_b32 s{S_WSRD+1}, s63")
    A(f"s_mov_b32 s{S_WSRD+2}, {448*896}")
    A(f"s_lshl_b32 s{S_TOFF0}, s{S_MT}, 16")
    A(f"s_add_u32 s{S_TOFF1}, s{S_TOFF0}, {32*1024}")
    A.label(f"{name}_dec")
    A(f"s_mov_b32 s{S_TSRD+3}, 0x20000")
    A(f"s_mov_b32 s{S_WSRD+3}, 0x20000")
    A(f"s_mov_b32 s{S_OSRD}, s64")
    A(f"s_mov_b32 s{S_OSRD+1}, s65")
    A(f"s_mov_b32 s{S_OSRD+2}, {2048*1792}")
    A(f"s_mov_b32 s{S_OSRD+3}, 0x20000")
    A(f"s_lshl_b32 s{S_LB}, s{S_W}, 13")
    A(f"v_lshrrev_b32 v{V_T0}, 3, v{V_LANE}")
    A(f"v_bfe_u32 v{V_T1}, v{V_LANE}, 4, 1")
    A(f"v_lshlrev_b32 v{V_T1}, 2, v{V_T1}")
    A(f"v_and_b32 v{V_T2}, 7, v{V_LANE}")
    A(f"v_xor_b32 v{V_T1}, v{V_T1}, v{V_T2}")
    A(f"v_mul_u32_u24 v{V_T0}, 896, v{V_T0}")
    A(f"v_lshl_add_u32 v{V_W0}, v{V_T1}, 4, v{V_T0}")
    A(f"s_lshl_b32 s{S_A}, s{S_NT}, 7")
    A(f"v_add_u32 v{V_W0}, s{S_A}, v{V_W0}")
    A(f"v_bfe_u32 v{V_T0}, v{V_LANE}, 2, 2")
    A(f"v_lshrrev_b32 v{V_T1}, 5, v{V_LANE}")
    A(f"v_lshl_add_u32 v{V_T0}, v{V_T1}, 2, v{V_T0}")
    A(f"v_bfe_u32 v{V_T1}, v{V_LANE}, 4, 1")
    A(f"v_lshlrev_b32 v{V_T1}, 1, v{V_T1}")
    A(f"v_bfe_u32 v{V_T2}, v{V_LANE}, 1, 1")
    A(f"v_add_u32 v{V_T1}, v{V_T1}, v{V_T2}")
    A(f"v_bfe_u32 v{V_T2}, v{V_T0}, 1, 1")
    A(f"v_lshlrev_b32 v{V_T2}, 2, v{V_T2}")
    A(f"v_xor_b32 v{V_T1}, v{V_T1}, v{V_T2}")
    A(f"v_lshlrev_b32 v{V_T1}, 4, v{V_T1}")
    A(f"v_lshl_add_u32 v{V_T0}, v{V_T0}, 7, v{V_T1}")
    A(f"v_and_b32 v{V_T1}, 1, v{V_LANE}")
    A(f"v_lshl_add_u32 v{V_T0}, v{V_T1}, 3, v{V_T0}")
    A(f"v_add_u32 v{V_FA0}, s{S_LB}, v{V_T0}")
    A(f"v_xor_b32 v{V_FA1}, 64, v{V_FA0}")
    A(f"s_mul_i32 s{S_WOFF}, s{S_W}, {512*896}")
    A(f"s_cmp_eq_u32 s{S_TYPE}, 1")
    A(f"s_cselect_b32 s{S_WOFF}, 0, s{S_WOFF}")
    A(f"s_mov_b32 s{S_Y}, {32*896}")
    A(f"s_cselect_b32 s{S_Y}, {28*896}, s{S_Y}")
    for i in range(64): A(f"v_mov_b32 v{ACC+i}, 0")
    def issue(ks):
        o = []
        o.append(f"buffer_load_dwordx4 {tfr(ks,0)}, v{V_L16}, s[{S_TSRD}:{S_TSRD+3}], s{S_TOFF0} offen")
        o.append(f"buffer_load_dwordx4 {tfr(ks,1)}, v{V_L16}, s[{S_TSRD}:{S_TSRD+3}], s{S_TOFF1} offen")
        o.append(f"s_add_u32 s{S_TOFF0}, s{S_TOFF0}, 1024")
        o.append(f"s_add_u32 s{S_TOFF1}, s{S_TOFF1}, 1024")
        for pc in range(2):
            sub = (ks & 1) * 2 + pc
            o.append(f"s_add_u32 m0, s{S_LB}, {(ks % 4) * 2048 + pc * 1024}")
            o.append(f"s_add_u32 s{S_A}, s{S_WOFF}, {sub * 8 * 896}")
            o.append(f"buffer_load_dwordx4 v{V_W0}, s[{S_WSRD}:{S_WSRD+3}], s{S_A} offen lds")
        if ks & 1:
            o.append(f"s_add_u32 s{S_WOFF}, s{S_WOFF}, s{S_Y}")
        return o
    def freads(ks):
        o = []
        st = ks & 1
        base = (ks % 4) * 2048
        for ft in range(2):
            va = V_FA0 if ft == 0 else V_FA1
            o.append(f"ds_read_b64_tr_b16 {ffr(st, ft, 0)}, v{va} offset:{base}")
            o.append(f"ds_read_b64_tr_b16 {ffr(st, ft, 1)}, v{va} offset:{base + 1024}")
        return o
    for ks in range(PD):
        for x in issue(ks): A(x)
    A(f"s_waitcnt vmcnt({4*(PD-1)})")
    for x in freads(0): A(x)
    for ks in range(32):
        if ks + PD < 32:
            for x in issue(ks + PD): A(x)
        if ks + 1 < 32:
            outstanding = min(31, ks + PD) - (ks + 1)
            A(f"s_waitcnt vmcnt({4*outstanding})")
            A("s_waitcnt lgkmcnt(0)")
            for x in freads(ks + 1): A(x)
        else:
            A("s_waitcnt lgkmcnt(0)")
        st = ks & 1
        for ft in range(2):
            for tt in range(2):
                d = v(ACC + (ft*2+tt)*16, 16)
                A(f"v_mfma_f32_32x32x16_bf16 {d}, {ffr(st, ft)}, {tfr(ks, tt)}, {d}")
    A("s_nop 7")
    A("s_nop 7")
    A(f"v_and_b32 v{V_T0}, 31, v{V_LANE}")
    A(f"s_lshl_b32 s{S_A}, s{S_MT}, 6")
    A(f"v_add_u32 v{V_T0}, s{S_A}, v{V_T0}")
    A(f"v_mul_u32_u24 v{V_T0}, 1792, v{V_T0}")
    A(f"v_lshrrev_b32 v{V_T1}, 5, v{V_LANE}")
    A(f"v_lshl_add_u32 v{V_ST}, v{V_T1}, 4, v{V_T0}")
    A(f"s_mul_i32 s{S_B}, s{S_TYPE}, 896")
    A(f"s_lshl_b32 s{S_C}, s{S_NT}, 7")
    A(f"s_add_u32 s{S_B}, s{S_B}, s{S_C}")
    def pack_store(src, ft, tt, half, soff):
        t = RED + 32
        A(f"v_cvt_pk_bf16_f32 v{t}, v{src}, v{src+1}")
        A(f"v_cvt_pk_bf16_f32 v{t+1}, v{src+2}, v{src+3}")
        A(f"v_cvt_pk_bf16_f32 v{t+2}, v{src+4}, v{src+5}")
        A(f"v_cvt_pk_bf16_f32 v{t+3}, v{src+6}, v{src+7}")
        A("s_nop 1")
        A(f"v_permlane32_swap_b32 v{t}, v{t+2}")
        A(f"v_permlane32_swap_b32 v{t+1}, v{t+3}")
        A("s_nop 1")
        A(f"buffer_store_dwordx4 {v(t,4)}, v{V_ST}, s[{S_OSRD}:{S_OSRD+3}], s{soff} offen offset:{ft*64 + half*32}")
        A("s_nop 1")
    A(f"s_cmp_eq_u32 s{S_TYPE}, 1")
    A(f"s_cbranch_scc1 {name}_epib")
    A("s_barrier")
    A(f"s_lshl_b32 s{S_A}, s{S_W}, 14")
    A(f"v_add_u32 v{V_T0}, s{S_A}, v{V_L16}")
    for q in range(16):
        A(f"ds_write_b128 v{V_T0}, {v(ACC+q*4,4)} offset:{q*1024}")
    A("s_waitcnt lgkmcnt(0)")
    A("s_barrier")
    A(f"s_lshl_b32 s{S_A}, s{S_W}, 11")
    A(f"v_add_u32 v{V_T0}, s{S_A}, v{V_L16}")
    A(f"v_add_u32 v{V_T1}, 65536, v{V_T0}")
    for ww in range(8):
        va = V_T0 if ww < 4 else V_T1
        for qq in range(2):
            A(f"ds_read_b128 {v(ACC+(ww*2+qq)*4,4)}, v{va} offset:{(ww%4)*16384 + qq*1024}")
    A("s_waitcnt lgkmcnt(0)")
    for ww in range(1, 8):
        for e in range(8):
            A(f"v_add_f32 v{ACC+e}, v{ACC+e}, v{ACC+ww*8+e}")
    A(f"s_lshr_b32 s{S_A}, s{S_W}, 2")
    A(f"s_lshl_b32 s{S_A}, s{S_A}, 6")
    A(f"s_add_u32 s{S_B}, s{S_B}, s{S_A}")
    A(f"s_and_b32 s{S_A}, s{S_W}, 1")
    A(f"s_lshl_b32 s{S_A}, s{S_A}, 5")
    A(f"s_add_u32 s{S_B}, s{S_B}, s{S_A}")
    A(f"s_bfe_u32 s{S_A}, s{S_W}, 0x10001")
    A(f"s_mul_i32 s{S_A}, s{S_A}, {32*1792}")
    A(f"s_add_u32 s{S_B}, s{S_B}, s{S_A}")
    pack_store(ACC, 0, 0, 0, S_B)
    A(f"s_branch {name}_end")
    A.label(f"{name}_epib")
    A(f"s_add_u32 s{S_C}, s{S_B}, {32*1792}")
    for ft in range(2):
        for tt in range(2):
            for half in range(2):
                pack_store(ACC + (ft*2+tt)*16 + half*8, ft, tt, half, S_B if tt == 0 else S_C)
    A.label(f"{name}_end")
    A("s_endpgm")
    return dict(vgpr=NV, accum=NV)
```

```python
import sys
from asmlib import *
import k1_gemm, k2_attn, k2b_task, k3_out
HEADER = open("concat_heads__compressed_kv_cla__sliding_block__prompt.s.ref").read().split("; Override launch geometry")[0]
def build(path, stamps=False):
    A = Asm()
    hdr = HEADER
    hdr += "; Launch list (three kernels run in order):\n"
    hdr += "; @launch kernel=proj_kernel grid=(432,1,1) block=(512,1,1) lds=163840\n"
    hdr += "; @launch kernel=attn_kernel grid=(256,1,1) block=(256,1,1) lds=163840\n"
    hdr += "; @launch kernel=outp_kernel grid=(256,1,1) block=(512,1,1) lds=131072\n"
    A.raw(hdr.rstrip("\n"))
    A.raw('.amdgcn_target "amdgcn-amd-amdhsa--gfx950"')
    i1 = k1_gemm.gen_k1(A, "proj_kernel", NW=8, stamps=stamps)
    i2 = k2_attn.gen_k2(A, "attn_kernel", stamps=stamps, pre_hook=k2b_task.emit_btask)
    i3 = k3_out.gen_k3(A, "outp_kernel", stamps=stamps)
    kernel_desc(A, "proj_kernel", i1["vgpr"], accum=i1["accum"])
    kernel_desc(A, "attn_kernel", i2["vgpr"], accum=i2["accum"])
    kernel_desc(A, "outp_kernel", i3["vgpr"], accum=i3["accum"])
    open(path, "w").write(A.text())
if __name__ == "__main__":
    build("concat_heads__compressed_kv_cla__sliding_block__prompt.s", stamps=False)
    build("full_st.s", stamps=True)
```
